```python
import torch

def _softmax(x, axis=-1):
    return torch.softmax(x, dim=axis)
def _gelu(x):
    return torch.nn.functional.gelu(x, approximate="tanh")
def _silu(x):
    return torch.nn.functional.silu(x)
def _sigmoid(x):
    return torch.sigmoid(x)
def _layernorm(x, axis=-1, eps=1e-5):
    m = x.mean(dim=axis, keepdim=True)
    v = x.var(dim=axis, keepdim=True, unbiased=False)
    return (x - m) / torch.sqrt(v + eps)
def _scatter_add(tgt, idx, src, axis=0):
    return tgt.clone().index_add_(axis, idx, src)
def _segment_sum(src, seg, n):
    out = torch.zeros((n,) + src.shape[1:], dtype=src.dtype)
    return out.index_add_(0, seg, src)
def _pad(x, pw):
    flat = tuple(v for pair in reversed(pw) for v in pair)
    return torch.nn.functional.pad(x, flat)

kernel_name = 'concat_heads__mha_block_cached__mha_block_cached__near_ridge'

def setup_inputs():

    _w = (lambda a: (lambda t: t.to(torch.bfloat16) if t.is_floating_point() else t)(torch.as_tensor(a)))
    def _A_setup():
        B, Sq, D = 8, 144, 1024
        H, Sk, Dh = 32, 512, 128
        return {
            "x": _w((lambda *s: torch.randn(*s, dtype=torch.bfloat16) * 0.8)(B, Sq, D)),
            "k_cache": _w((lambda *s: torch.randn(*s, dtype=torch.bfloat16) * 0.8)(B, H, Sk, Dh)),
            "v_cache": _w((lambda *s: torch.randn(*s, dtype=torch.bfloat16) * 0.05)(B, H, Sk, Dh)),
            "wq": _w((lambda *s: torch.randn(*s, dtype=torch.bfloat16) * 0.8)(D, H * Dh) * (D ** -0.5)),
            "wo": _w((lambda *s: torch.randn(*s, dtype=torch.bfloat16) * 0.05)(H * Dh, D) * ((H * Dh) ** -0.5)),
        }
    _A_in = _A_setup()

    def _B_setup():
        B, Sq, D = 8, 144, 1024
        H, Sk, Dh = 32, 512, 128
        return {
            "x": _w((lambda *s: torch.randn(*s, dtype=torch.bfloat16) * 0.8)(B, Sq, D)),
            "k_cache": _w((lambda *s: torch.randn(*s, dtype=torch.bfloat16) * 0.8)(B, H, Sk, Dh)),
            "v_cache": _w((lambda *s: torch.randn(*s, dtype=torch.bfloat16) * 0.05)(B, H, Sk, Dh)),
            "wq": _w((lambda *s: torch.randn(*s, dtype=torch.bfloat16) * 0.8)(D, H * Dh) * (D ** -0.5)),
            "wo": _w((lambda *s: torch.randn(*s, dtype=torch.bfloat16) * 0.05)(H * Dh, D) * ((H * Dh) ** -0.5)),
        }
    _B_in = _B_setup()

    return {
        "A_x": _A_in["x"],
        "A_k_cache": _A_in["k_cache"],
        "A_v_cache": _A_in["v_cache"],
        "A_wq": _A_in["wq"],
        "A_wo": _A_in["wo"],
        "B_x": _B_in["x"],
        "B_k_cache": _B_in["k_cache"],
        "B_v_cache": _B_in["v_cache"],
        "B_wq": _B_in["wq"],
        "B_wo": _B_in["wo"],
    }

def reference(A_x, A_k_cache, A_v_cache, A_wq, A_wo, B_x, B_k_cache, B_v_cache, B_wq, B_wo):
    def _A_ref(x, k_cache, v_cache, wq, wo):
        B, Sq, D = x.shape
        H, Dh = 32, 128
        q = (lambda x, *d: x.permute(*d))((x @ wq).reshape(B, Sq, H, Dh), 0, 2, 1, 3)
        scores = torch.einsum("bhqd,bhkd->bhqk", q, k_cache) * (Dh ** -0.5)
        p = _softmax(scores, axis=-1)
        o = torch.einsum("bhqk,bhkd->bhqd", p, v_cache)
        return (lambda x, *d: x.permute(*d))(o, 0, 2, 1, 3).reshape(B, Sq, H * Dh) @ wo

    def _B_ref(x, k_cache, v_cache, wq, wo):
        B, Sq, D = x.shape
        H, Dh = 32, 128
        q = (lambda x, *d: x.permute(*d))((x @ wq).reshape(B, Sq, H, Dh), 0, 2, 1, 3)
        scores = torch.einsum("bhqd,bhkd->bhqk", q, k_cache) * (Dh ** -0.5)
        p = _softmax(scores, axis=-1)
        o = torch.einsum("bhqk,bhkd->bhqd", p, v_cache)
        return (lambda x, *d: x.permute(*d))(o, 0, 2, 1, 3).reshape(B, Sq, H * Dh) @ wo

    a = _A_ref(A_x, A_k_cache, A_v_cache, A_wq, A_wo)
    b = _B_ref(B_x, B_k_cache, B_v_cache, B_wq, B_wo)
    return torch.concatenate([a, b], axis=-1)
```

```python
class Asm:
    def __init__(self):
        self.lines = []
    def e(self, s):
        self.lines.append("    " + s)
    def label(self, s):
        self.lines.append(s + ":")
    def raw(self, s):
        self.lines.append(s)
    def c(self, s):
        self.lines.append("    ; " + s)
    def text(self):
        return "\n".join(self.lines) + "\n"

def vr(b, n=1, f="v"):
    return f"{f}{b}" if n == 1 else f"{f}[{b}:{b+n-1}]"
def ar(b, n=1):
    return vr(b, n, "a")
def sr(b, n=1):
    return vr(b, n, "s")

def mfma(d, a, b, c):
    return f"v_mfma_f32_16x16x32_bf16 {d}, {a}, {b}, {c}"


class Gaps:
    def __init__(self, mfmas):
        self.m = list(mfmas)
        n = len(self.m)
        self.n = n
        self.kind = [None] * n
        self.pre = [[] for _ in range(n)]
        self.main = [[] for _ in range(n)]
        self.valu = [[] for _ in range(n)]
        self.post = [[] for _ in range(n)]

    def set(self, i, kind, instr):
        assert self.kind[i] is None, (i, kind, self.kind[i])
        if kind == 'G':
            assert not self.pre[i] and not self.valu[i]
        if kind in ('E',):
            assert not self.valu[i]
        if kind == 'T':
            assert len(self.valu[i]) <= 1
        self.kind[i] = kind
        self.main[i].append(instr)

    def free_main(self, i, kind):
        if self.kind[i] is not None: return False
        if kind == 'G': return not self.pre[i] and not self.valu[i] and not self.post[i]
        if kind == 'E': return not self.valu[i] and len(self.pre[i]) <= 1
        if kind == 'T': return len(self.valu[i]) <= 1 and len(self.pre[i]) <= 1
        return True

    def valu_room(self, i):
        k = self.kind[i]
        if len(self.pre[i]) > 1: return 0
        if k is None: return 2 - len(self.valu[i])
        if k == 'T': return 1 - len(self.valu[i])
        return 0

    def pre_room(self, i):
        k = self.kind[i]
        if k == 'G': return 0
        if k is None and not self.valu[i]: return 3 - len(self.pre[i])
        return 1 - len(self.pre[i])

    def add_valu(self, i, instr):
        assert self.valu_room(i) > 0
        self.valu[i].append(instr)

    def add_pre(self, i, instr):
        assert self.pre_room(i) > 0, (i, instr, self.kind[i], self.pre[i])
        self.pre[i].append(instr)

    def place_pre(self, instr, lo, hi):
        for i in range(lo, hi + 1):
            if self.pre_room(i) > 0:
                self.add_pre(i, instr); return i
        raise RuntimeError(f"no scalar room for {instr} in [{lo},{hi}]")

    def place_valu(self, instr, lo, hi=None):
        hi = self.n - 1 if hi is None else hi
        for i in range(lo, hi + 1):
            if self.valu_room(i) > 0:
                self.add_valu(i, instr); return i
        self.post[hi].append(instr)
        return hi

    def emit(self, A):
        for i in range(self.n):
            A.e(self.m[i])
            for x in self.pre[i]: A.e(x)
            for x in self.main[i]: A.e(x)
            for x in self.valu[i]: A.e(x)
            for x in self.post[i]: A.e(x)

    def pattern(self):
        out = []
        for i in range(self.n):
            out.append("s" * len(self.pre[i]) + (self.kind[i] or "") + "a" * len(self.valu[i]) + "!" * len(self.post[i]))
        return ",".join(out)
```

```python
from asmlib import *
import sys
def pol(p): return (" " + p) if p else ""
STAMP_OFF = (128 << 20) + (1 << 20)

class K2:
    lds = 65536
    vgprs = 296
    accum = 256
    def __init__(self, A, cfg):
        self.A = A; self.cfg = cfg; self.nst = 0

    def stamp(self):
        if self.cfg.stamp:
            self.A.e(f"s_memtime {sr(64 + 2 * self.nst, 2)}"); self.nst += 1

    def gen(self):
        A = self.A; e = A.e; c = self.cfg
        SO, SW, SOUT = 8, 12, 16
        A.raw(".p2align 8"); A.raw(".type oproj_kernel,@function"); A.label("oproj_kernel")
        e("s_cmp_ge_u32 s2, 256"); e("s_cbranch_scc1 L2_end")
        e("s_load_dwordx2 s[44:45], s[0:1], 32")
        e("s_load_dwordx2 s[46:47], s[0:1], 72")
        e("s_load_dwordx2 s[48:49], s[0:1], 80")
        e("s_load_dwordx2 s[50:51], s[0:1], 96")
        self.stamp()
        e("v_lshrrev_b32 v1, 6, v0"); e("v_and_b32 v0, 63, v0"); e("v_readfirstlane_b32 s3, v1")
        e("s_and_b32 s6, s2, 7"); e("s_lshr_b32 s7, s2, 3")
        e("s_lshr_b32 s20, s6, 2")
        e("s_bfe_u32 s21, s6, 0x10001"); e("s_lshl_b32 s21, s21, 2"); e("s_lshr_b32 s22, s7, 3"); e("s_add_u32 s21, s21, s22")
        e("s_and_b32 s22, s6, 1"); e("s_lshl_b32 s22, s22, 3"); e("s_and_b32 s23, s7, 7"); e("s_add_u32 s22, s22, s23")
        e("v_and_b32 v2, 3, v0"); e("v_bfe_u32 v3, v0, 2, 2"); e("v_lshrrev_b32 v4, 4, v0")
        e("v_lshrrev_b32 v6, 5, v0"); e("v_lshlrev_b32 v7, 1, v6"); e("v_xor_b32 v7, v7, v2"); e("v_lshlrev_b32 v7, 4, v7")
        e("v_lshl_add_u32 v6, v6, 2, v3"); e("v_lshl_add_u32 v7, v6, 11, v7")
        e("v_and_b32 v6, 1, v4"); e("v_lshl_add_u32 v5, v6, 6, v7")
        e("v_lshlrev_b32 v7, 3, v2"); e("v_lshl_add_u32 v7, v3, 6, v7"); e("v_lshl_add_u32 v7, v4, 9, v7")
        e("v_lshl_add_u32 v8, v6, 5, v7"); e("v_xor_b32 v9, 32, v8")
        e("s_lshl_b32 s24, s3, 1"); e("s_add_u32 s24, s24, 1"); e("s_cmp_eq_u32 s3, 0"); e("s_cselect_b32 s24, 0, s24")
        e("s_lshl_b32 s25, s24, 10"); e("v_lshlrev_b32 v10, 4, v0"); e("v_add_u32 v10, s25, v10")
        e("v_and_b32 v7, 15, v0"); e("s_lshl_b32 s25, s24, 4"); e("v_add_u32 v7, s25, v7"); e("v_lshlrev_b32 v7, 12, v7")
        e("v_lshlrev_b32 v6, 1, v6"); e("v_lshrrev_b32 v12, 1, v4"); e("v_or_b32 v6, v6, v12"); e("v_lshl_add_u32 v11, v6, 4, v7")
        e("s_waitcnt lgkmcnt(0)")
        e("s_cmp_eq_u32 s20, 0"); e("s_cselect_b64 s[44:45], s[44:45], s[46:47]")
        e("s_lshl_b32 s25, s20, 3"); e("s_add_u32 s25, s25, s21"); e(f"s_mul_i32 s25, s25, {128 * 9216}")
        e(f"s_add_u32 s{SO}, s50, s25"); e(f"s_addc_u32 s{SO+1}, s51, 0"); e(f"s_mov_b32 s{SO+2}, {128 * 9216}"); e(f"s_mov_b32 s{SO+3}, 0x20000")
        e("s_lshl_b32 s25, s22, 7")
        e(f"s_add_u32 s{SW}, s44, s25"); e(f"s_addc_u32 s{SW+1}, s45, 0"); e(f"s_sub_u32 s{SW+2}, 0x800000, s25"); e(f"s_mov_b32 s{SW+3}, 0x20000")
        e(f"s_mul_i32 s26, s21, {144 * 4096}"); e("s_lshl_b32 s27, s20, 11"); e("s_add_u32 s26, s26, s27"); e("s_add_u32 s26, s26, s25")
        e(f"s_add_u32 s{SOUT}, s48, s26"); e(f"s_addc_u32 s{SOUT+1}, s49, 0"); e(f"s_sub_u32 s{SOUT+2}, {8 * 144 * 4096}, s26"); e(f"s_mov_b32 s{SOUT+3}, 0x20000")
        e("s_mul_i32 s30, s3, 5"); e("s_sub_u32 s30, s30, 4"); e("s_cmp_eq_u32 s3, 0"); e("s_cselect_b32 s30, 0, s30")
        e("s_lshl_b32 s31, s30, 10")
        e("s_lshl_b32 s32, s30, 14")
        e("s_mov_b32 s33, 0")
        e("s_cmp_eq_u32 s3, 0"); e("s_cbranch_scc0 L2_two")
        nst0 = self.nst
        self.body(3, 1, "a")
        A.label("L2_two")
        self.nst = nst0
        self.body(2, 5, "b")
        A.label("L2_end"); e("s_endpgm")

    def body(self, NTL, ND, tag):
        A = self.A; e = A.e; c = self.cfg
        SO, SW, SOUT = 8, 12, 16
        ACC = lambda t, u: 16 + (t * 4 + u) * 4
        OB = lambda buf, j, t: 64 + ((buf * 4 + j) * 3 + t) * 4
        AFR = lambda par, u: par * 16 + u * 4
        per = ND + 4 * NTL
        def loads(slot):
            L = []
            for i in range(ND):
                L.append([f"s_add_u32 m0, s31, {slot * 16384 + i * 1024}", f"s_add_u32 s28, s32, {i * 16384}",
                          f"buffer_load_dwordx4 v5, {sr(SW, 4)}, s28 offen{pol(c.wo_pol)} lds"])
            O = []
            for j in range(4):
                for t in range(NTL):
                    pre = [f"s_add_u32 s29, s33, {j * 9216}"] if t == 0 else []
                    O.append(pre + [f"buffer_load_dwordx4 {vr(OB(slot, j, t), 4)}, v10, {sr(SO, 4)}, s29 offen offset:{t * 1024}{pol(c.old_pol)}"])
            return L, O
        adv = [f"s_add_u32 s32, s32, {128 * 2048}", f"s_add_u32 s33, s33, {4 * 9216}"]
        for st in range(3):
            L, O = loads(st)
            for x in L + O:
                for y in x: e(y)
            for y in adv: e(y)
        for t in range(NTL):
            for u in range(4):
                for i in range(4): e(f"v_mov_b32 v{ACC(t, u) + i}, 0")
            for i in range(4): e(f"v_mov_b32 v{OB(3, 3, t) + i}, 0")
        for i in range(16): e(f"v_accvgpr_write_b32 a{16 + i}, 0")
        def mf(par, buf, j):
            return [mfma(vr(ACC(t, u), 4), ar(AFR(par, u), 4), vr(OB(buf, j, t), 4), vr(ACC(t, u), 4)) for u in range(4) for t in range(NTL)]
        def rd(par, slot, s):
            return [f"ds_read_b64_tr_b16 {ar(AFR(par, u) + 2 * rho, 2)}, v{8 + (u & 1)} offset:{slot * 16384 + (8 * s + 4 * rho) * 512 + (u >> 1) * 256}"
                    for u in range(4) for rho in range(2)]
        e("s_mov_b32 s34, 8")
        A.raw(".p2align 6"); A.label(f"L2_loop{tag}")
        for s in range(4):
            e(f"s_waitcnt vmcnt({2 * per})"); e("s_barrier")
            L, O = loads((s + 3) % 4)
            ext = [[] for _ in range(4)]
            for i, x in enumerate(L): ext[min(i * 4 // max(ND, 1), 3) if ND > 1 else 0].append(x)
            for j in range(4): ext[j] += O[j * NTL:(j + 1) * NTL]
            for j in range(4):
                M = mf((j + 1) & 1, (s - 1) % 4, 3) if j == 0 else mf((j + 1) & 1, s, j - 1)
                R = rd(j & 1, s, j)
                X = list(ext[j])
                nm = len(M)
                for i, m in enumerate(M):
                    e(m)
                    if NTL == 3:
                        if i < 8: e(R[i])
                        elif X:
                            for y in X.pop(0): e(y)
                    else:
                        if i < 4: e(R[2 * i]); e(R[2 * i + 1])
                        elif X:
                            for y in X.pop(0): e(y)
                for x in X:
                    for y in x: e(y)
                e("s_waitcnt lgkmcnt(0)")
            for y in adv: e(y)
        e("s_sub_u32 s34, s34, 1"); e("s_cmp_lg_u32 s34, 0"); e(f"s_cbranch_scc1 L2_loop{tag}")
        for m in mf(1, 3, 3): e(m)
        self.stamp()
        e("s_nop 7")
        for t in range(NTL):
            for p in range(2):
                x, y = ACC(t, 2 * p), ACC(t, 2 * p + 1)
                q = 64 + (t * 2 + p) * 4
                e(f"v_cvt_pk_bf16_f32 v{q}, v{x}, v{x+1}"); e(f"v_cvt_pk_bf16_f32 v{q+2}, v{y}, v{y+1}")
                e(f"v_cvt_pk_bf16_f32 v{q+1}, v{x+2}, v{x+3}"); e(f"v_cvt_pk_bf16_f32 v{q+3}, v{y+2}, v{y+3}")
        e("s_waitcnt vmcnt(0)")
        for t in range(NTL):
            for p in range(2):
                x, y = ACC(t, 2 * p), ACC(t, 2 * p + 1)
                q = 64 + (t * 2 + p) * 4
                e(f"v_cvt_pk_bf16_f32 v{q}, v{x}, v{x+1}"); e(f"v_cvt_pk_bf16_f32 v{q+2}, v{y}, v{y+1}")
                e(f"v_cvt_pk_bf16_f32 v{q+1}, v{x+2}, v{x+3}"); e(f"v_cvt_pk_bf16_f32 v{q+3}, v{y+2}, v{y+3}")
                e("s_nop 1")
                e(f"v_permlane16_swap_b32 v{q}, v{q+2}"); e(f"v_permlane16_swap_b32 v{q+1}, v{q+3}")
                e(f"s_mov_b32 s28, {t * 65536}")
                e(f"buffer_store_dwordx4 {vr(q, 4)}, v11, {sr(SOUT, 4)}, s28 offen offset:{p * 64}{pol(c.out_pol)}")
        if c.stamp and tag == "a":
            e("s_waitcnt vmcnt(0)")
            self.stamp()
            e(f"s_memrealtime {sr(64 + 2 * self.nst, 2)}"); self.nst += 1
            e("s_waitcnt lgkmcnt(0)")
            e(f"s_add_u32 s{SO}, s50, {STAMP_OFF}"); e(f"s_addc_u32 s{SO+1}, s51, 0"); e(f"s_mov_b32 s{SO+2}, 0x100000")
            e("s_lshl_b32 s28, s2, 7"); e("v_mov_b32 v1, 0"); e("s_mov_b64 exec, 1")
            for i in range(self.nst):
                e(f"v_mov_b32 v2, s{64 + 2 * i}"); e(f"v_mov_b32 v3, s{64 + 2 * i + 1}")
                e(f"buffer_store_dwordx2 v[2:3], v1, {sr(SO, 4)}, s28 offen offset:{8 * i}")
                e("s_nop 1")
        e("s_endpgm")
```

```python
import sys, struct, math
from asmlib import *

NAME = "concat_heads__mha_block_cached__mha_block_cached__near_ridge"
def f32(x): return "0x%08x" % struct.unpack("<I", struct.pack("<f", x))[0]
QSCALE = math.log2(math.e) / math.sqrt(128.0)
BIAS = 7.0

class Cfg:
    stamp = False
    kv_pol = "nt"
    x_pol = ""
    w_pol = ""
    ost_pol = ""
    old_pol = ""
    wo_pol = ""
    out_pol = ""
    verbose = False

def pol(p): return (" " + p) if p else ""

STAMP_OFF = 128 << 20

S_W, S_HF, S_HH = 3, 4, 5
SX, SW, SK, SV, SO = 8, 12, 16, 20, 24
S_T = 28
S_CNT = 29
S_XOFF, S_WOFF = 30, 31
S_SLOT = 32
S_DELTA = 33
S_SLOTI = 34
S_KOFF, S_VOFF = 35, 36
S_KSLOT, S_VSLOT = 37, 38
S_DK, S_DV = 39, 40
S_KRD, S_VRD = 41, 42
S_RET = 60
S_QS = 62
S_ST = 64
V_DX, V_DX5, V_DW, V_DK, V_DV = 2, 3, 4, 5, 6
V_XO, V_X9 = 8, 9
V_WR = 10
V_KR = 14
V_VR = 18
V_OR, V_CK = 22, 23
V_L16 = 7
V_TMP = 24
def Q(t, v): return 32 + (t * 4 + v) * 4
def ACC(a, t): return (112 + (a * 4 + t) * 4) if t < 4 else (240 + a * 4)
def S_(U, kt, t): return (112 + (kt * 5 + t) * 4) if U == 0 else (152 + (kt * 4 + t) * 4)
def P_(U, t): return (184 + t * 4) if U == 0 else (204 + t * 4)
def CI(t): return 220 + t * 4
V_ET = 240
NT = [5, 4]
def O_(t, u): return (t * 8 + u) * 4
def KF(kt, v): return 160 + (kt * 4 + v) * 4
def VF(u): return 192 + u * 4
def L_(t): return 224 + t * 4
A_ONES = 244
def AF(par, a): return (152 if par == 0 else 204) + a * 4
def BF(par, t): return (152 if par == 0 else 204) + 32 + t * 4
QSLOT = 53248
XBYTES = 20480

class K1:
    def __init__(self, A, cfg):
        self.A = A; self.cfg = cfg; self.nst = 0; self.tramps = []

    def stamp(self):
        if self.cfg.stamp:
            self.A.e(f"s_memtime {sr(S_ST + 2 * self.nst, 2)}")
            self.nst += 1

    def dma_stage(self):
        c = self.cfg; L = []
        for j in range(5):
            v = V_DX if j < 4 else V_DX5
            off = j * 65536 if j < 4 else 0
            L.append(([f"s_add_u32 m0, s{S_SLOT}, {j * 4096}", f"s_add_u32 s{S_T}, s{S_XOFF}, {off}"],
                      f"buffer_load_dwordx4 v{v}, {sr(SX, 4)}, s{S_T} offen{pol(c.x_pol)} lds"))
        for m in range(4):
            for hh in range(2):
                L.append(([f"s_add_u32 m0, s{S_SLOT}, {XBYTES + hh * 16384 + m * 4096}",
                           f"s_add_u32 s{S_T}, s{S_WOFF}, {m * 131072 + hh * 256}"],
                          f"buffer_load_dwordx4 v{V_DW}, {sr(SW, 4)}, s{S_T} offen{pol(c.w_pol)} lds"))
        return L

    def dma_kv(self, isK, slot_s=None, slot_imm=None, off_s=None, off_imm=None):
        c = self.cfg; L = []
        for m in range(4):
            for hh in range(2):
                lo = hh * 16384 + m * 4096
                go = hh * 131072 + m * 4096
                if slot_s is not None: a = f"s_add_u32 m0, s{slot_s}, {lo}"
                else: a = f"s_add_u32 m0, s6, {slot_imm + lo}"
                if off_s is not None: b = f"s_add_u32 s{S_T}, s{off_s}, {go}"
                else: b = f"s_mov_b32 s{S_T}, {off_imm + go}"
                L.append(([a, b], f"buffer_load_dwordx4 v{V_DK if isK else V_DV}, {sr(SK if isK else SV, 4)}, s{S_T} offen{pol(c.kv_pol)} lds"))
        return L

    def emit_dmas_plain(self, L):
        for pre, d in L:
            for p in pre: self.A.e(p)
            self.A.e(d)

    @staticmethod
    def put_dmas(G, L, positions, first_lo=0):
        assert len(L) == len(positions)
        for (pre, d), p in zip(L, positions): G.set(p, 'G', d)
        prev = first_lo - 1
        return [(pre, p) for (pre, d), p in zip(L, positions)]

    @staticmethod
    def put_preludes(G, pl, first_lo=0):
        prev = first_lo - 1
        for pre, p in pl:
            lo = prev + 1
            for x in pre:
                G.place_pre(x, lo, p - 1)
            prev = p

    def q_mfmas(self, par, first=False):
        M = []
        for a in range(8):
            for t in range(5 if a < 4 else 4):
                d = vr(ACC(a, t), 4)
                M.append(mfma(d, ar(AF(par, a), 4), ar(BF(par, t), 4), "0" if first else d))
        return M

    def q_reads(self, par, s):
        R = []
        for t in range(4):
            R.append(f"ds_read_b128 {ar(BF(par, t), 4)}, v{V_XO} offset:{t * 2048 + s * 256}")
        R.append(f"ds_read_b128 {ar(BF(par, 4), 4)}, v{V_X9} offset:{s * 256}")
        for a in range(8):
            z, w1, e = a >> 2, (a >> 1) & 1, a & 1
            for rho in range(2):
                R.append(f"ds_read_b64_tr_b16 {ar(AF(par, a) + 2 * rho, 2)}, v{V_WR + e * 2 + z} offset:{s * 8192 + rho * 1024 + w1 * 256}")
        return R

    def q_body(self, dmas, valu=(), tail_pre=(), vm=None, first=False, only_first_half=False, only_second_half=False):
        A = self.A
        halves = []
        if not only_second_half: halves.append((1, 0, 0))
        if not only_first_half: halves.append((0, 1, 1))
        M = []
        for (mp, rp, rs) in halves: M += self.q_mfmas(mp, first=first)
        G = Gaps(M)
        n = G.n
        nd = len(dmas)
        pos = []
        if nd:
            step = (n - 4) / nd
            pos = [int(2 + step * i + 0.5) for i in range(nd)]
            pos = [p - 1 if p % 36 == 35 else p for p in pos]
        pl = self.put_dmas(G, dmas, pos)
        for hi, (mp, rp, rs) in enumerate(halves):
            if only_first_half: break
            R = self.q_reads(rp, rs)
            i = hi * 36
            for r in R:
                while not G.free_main(i, 'T'): i += 1
                G.set(i, 'T', r)
            assert i <= hi * 36 + 30, i
        self.put_preludes(G, pl)
        if not only_first_half:
            for hi in range(len(halves)):
                last = hi * 36 + 35
                if hi == len(halves) - 1:
                    G.add_pre(last, f"s_waitcnt vmcnt({vm}) lgkmcnt(0)")
                    G.add_pre(last, "s_barrier")
                else:
                    G.add_pre(last, "s_waitcnt lgkmcnt(0)")
        return G

    def gen(self):
        A = self.A; e = A.e; c = self.cfg
        A.raw(".p2align 8"); A.raw(".type attn_kernel,@function"); A.label("attn_kernel")
        e("s_cmp_ge_u32 s2, 256"); e("s_cbranch_scc1 L1_end")
        e("s_load_dwordx8 s[44:51], s[0:1], 0")
        e("s_load_dwordx8 s[52:59], s[0:1], 40")
        e("s_load_dwordx2 s[60:61], s[0:1], 96")
        self.stamp()
        e("v_lshrrev_b32 v1, 6, v0")
        e("v_and_b32 v0, 63, v0")
        e(f"v_readfirstlane_b32 s{S_W}, v1")
        e("s_and_b32 s6, s2, 7")
        e("s_lshr_b32 s7, s2, 3")
        e("s_lshr_b32 s28, s6, 2")
        e("s_and_b32 s29, s6, 3"); e("s_lshl_b32 s29, s29, 2"); e("s_and_b32 s30, s7, 3"); e("s_add_u32 s29, s29, s30")
        e("s_lshr_b32 s30, s7, 2")
        e(f"s_and_b32 s{S_HF}, s{S_W}, 1"); e(f"s_lshr_b32 s{S_HH}, s{S_W}, 1")
        e("v_and_b32 v24, 3, v0")
        e("v_bfe_u32 v25, v0, 2, 2")
        e("v_lshrrev_b32 v26, 4, v0")
        e(f"v_lshlrev_b32 v{V_L16}, 4, v0")
        e(f"s_lshl_b32 s31, s{S_HF}, 1")
        e("v_xor_b32 v27, s31, v24")
        e("v_lshlrev_b32 v27, 4, v27")
        e("v_lshrrev_b32 v28, 5, v0"); e("v_lshl_add_u32 v28, v28, 2, v25")
        e("v_lshlrev_b32 v28, 11, v28")
        e("v_and_b32 v29, 1, v26"); e("v_lshl_add_u32 v28, v29, 6, v28")
        e("v_add_u32 v28, v28, v27")
        e(f"s_lshl_b32 s31, s{S_W}, 14")
        e(f"v_add_u32 v{V_DX}, s31, v28")
        e(f"s_cmp_lt_u32 s{S_W}, 2"); e("s_mov_b32 s31, 0x40000"); e("s_cselect_b32 s31, s31, 0x7ff00000")
        e(f"v_add_u32 v{V_DX5}, s31, v{V_DX}")
        e("v_lshlrev_b32 v28, 8, v25"); e("v_lshl_add_u32 v28, v26, 6, v28")
        e(f"s_lshl_b32 s6, s{S_W}, 10")
        e("v_add_u32 v28, s6, v28")
        e(f"v_add_u32 v{V_DV}, v28, v27")
        e(f"v_xor_b32 v27, s{S_HH}, v24"); e(f"v_lshl_add_u32 v{V_DK}, v27, 4, v28")
        e(f"s_lshl_b32 s31, s{S_HH}, 1"); e("v_xor_b32 v27, s31, v24"); e("v_lshlrev_b32 v27, 4, v27")
        e("v_lshl_add_u32 v27, v26, 6, v27"); e("v_lshl_add_u32 v27, v25, 13, v27")
        e(f"s_lshl_b32 s31, s{S_W}, 15"); e(f"v_add_u32 v{V_DW}, s31, v27")
        e("s_waitcnt lgkmcnt(0)")
        e("s_cmp_eq_u32 s28, 0")
        e("s_cselect_b64 s[44:45], s[44:45], s[52:53]")
        e("s_cselect_b64 s[46:47], s[46:47], s[54:55]")
        e("s_cselect_b64 s[48:49], s[48:49], s[56:57]")
        e("s_cselect_b64 s[50:51], s[50:51], s[58:59]")
        e("s_mul_i32 s31, s30, 294912")
        e(f"s_add_u32 s{SX}, s44, s31"); e(f"s_addc_u32 s{SX+1}, s45, 0"); e(f"s_mov_b32 s{SX+2}, 294912"); e(f"s_mov_b32 s{SX+3}, 0x20000")
        e("s_lshl_b32 s31, s29, 9")
        e(f"s_add_u32 s{SW}, s50, s31"); e(f"s_addc_u32 s{SW+1}, s51, 0"); e(f"s_sub_u32 s{SW+2}, 0x800000, s31"); e(f"s_mov_b32 s{SW+3}, 0x20000")
        e(f"s_mov_b32 s{S_XOFF}, 0"); e(f"s_mov_b32 s{S_WOFF}, 0"); e(f"s_mov_b32 s{S_SLOT}, s6")
        for st in range(3):
            self.emit_dmas_plain(self.dma_stage())
            e(f"s_add_u32 s{S_XOFF}, s{S_XOFF}, 128"); e(f"s_add_u32 s{S_WOFF}, s{S_WOFF}, {64 * 8192}")
            if st < 2: e(f"s_add_u32 s{S_SLOT}, s{S_SLOT}, {QSLOT}")
            if st == 0:
                pass
        e(f"s_mov_b32 s{S_SLOT}, s6")
        e("s_and_b32 s43, s2, 7"); e("s_lshr_b32 s7, s2, 3")
        e("s_lshr_b32 s52, s43, 2")
        e("s_and_b32 s53, s43, 3"); e("s_lshl_b32 s53, s53, 2"); e("s_and_b32 s54, s7, 3"); e("s_add_u32 s53, s53, s54")
        e("s_lshr_b32 s54, s7, 2")
        e("s_lshl_b32 s55, s54, 4"); e("s_add_u32 s55, s55, s53"); e("s_lshl_b32 s55, s55, 18")
        e(f"s_add_u32 s{SK}, s46, s55"); e(f"s_addc_u32 s{SK+1}, s47, 0"); e(f"s_mov_b32 s{SK+2}, 262144"); e(f"s_mov_b32 s{SK+3}, 0x20000")
        e(f"s_add_u32 s{SV}, s48, s55"); e(f"s_addc_u32 s{SV+1}, s49, 0"); e(f"s_mov_b32 s{SV+2}, 262144"); e(f"s_mov_b32 s{SV+3}, 0x20000")
        e("s_lshl_b32 s55, s52, 3"); e("s_add_u32 s55, s55, s54"); e("s_lshl_b32 s55, s55, 4"); e("s_add_u32 s55, s55, s53")
        e("s_mul_i32 s55, s55, 73728")
        e(f"s_add_u32 s{SO}, s60, s55"); e(f"s_addc_u32 s{SO+1}, s61, 0"); e(f"s_mov_b32 s{SO+2}, 73728"); e(f"s_mov_b32 s{SO+3}, 0x20000")
        if c.stamp:
            e("s_mov_b64 s[56:57], s[60:61]")
        e(f"s_mov_b32 s44, {QSLOT}"); e("s_mov_b32 s45, 65536")
        e(f"s_mov_b32 s{S_QS}, {f32(QSCALE)}"); e(f"s_mov_b32 s{S_QS+1}, {f32(QSCALE)}")
        e("v_lshrrev_b32 v27, 1, v25")
        e("v_lshlrev_b32 v28, 1, v27"); e("v_xor_b32 v28, v28, v26")
        e("v_lshlrev_b32 v28, 4, v28"); e("v_lshl_add_u32 v28, v24, 6, v28"); e("v_lshl_add_u32 v28, v25, 9, v28")
        e(f"s_lshl_b32 s55, s{S_HF}, 13")
        e(f"v_add_u32 v{V_XO}, s55, v28")
        e(f"v_add_u32 v{V_X9}, 16384, v28")
        e("v_and_b32 v28, 1, v26"); e("v_lshlrev_b32 v28, 1, v28"); e("v_lshrrev_b32 v29, 1, v26"); e("v_or_b32 v28, v28, v29")
        e("v_xor_b32 v28, v28, v27"); e("v_lshlrev_b32 v28, 4, v28")
        e("v_lshl_add_u32 v28, v24, 6, v28"); e("v_lshl_add_u32 v28, v25, 10, v28")
        e(f"s_lshl_b32 s54, s{S_HH}, 14")
        e(f"s_xor_b32 s53, s{S_HF}, 1")
        for U in range(2):
            for z in range(2):
                su = S_HF if U == 0 else 53
                sz = S_HF if z == 0 else 53
                e(f"s_lshl_b32 s55, s{su}, 13"); e(f"s_lshl_b32 s52, s{sz}, 9"); e("s_add_u32 s55, s55, s52"); e("s_add_u32 s55, s55, s54")
                e(f"s_add_u32 s55, s55, {2 * 32768}")
                e(f"v_add_u32 v{V_KR + U * 2 + z}, s55, v28")
        e("v_lshlrev_b32 v28, 3, v24"); e("v_lshl_add_u32 v28, v25, 6, v28")
        e("v_and_b32 v29, 1, v26")
        e("v_lshl_add_u32 v30, v29, 5, v28")
        e("v_xor_b32 v31, 32, v30")
        for ee in range(2):
            src = 30 + ee
            for U in range(2):
                su = S_HF if U == 0 else 53
                e(f"s_lshl_b32 s55, s{su}, 13"); e("s_add_u32 s55, s55, s54"); e(f"s_add_u32 s55, s55, {4 * 32768}")
                e(f"v_lshl_add_u32 v27, v26, 10, v{src}")
                e(f"v_add_u32 v{V_VR + U * 2 + ee}, s55, v27")
            for z in range(2):
                sz = S_HF if z == 0 else 53
                e(f"s_lshl_b32 s55, s{sz}, 9"); e("s_add_u32 s55, s55, s54"); e(f"s_add_u32 s55, s55, {XBYTES}")
                e(f"v_lshl_add_u32 v27, v26, 11, v{src}")
                e(f"v_add_u32 v{V_WR + ee * 2 + z}, s55, v27")
        for i in range(152): e(f"v_accvgpr_write_b32 a{i}, 0")
        e("s_waitcnt vmcnt(26)"); e("s_barrier")
        self.stamp()
        for r in self.q_reads(0, 0): e(r)
        e("s_waitcnt lgkmcnt(0)")
        G = self.q_body([], vm=13, first=True, only_second_half=True)
        rd = [V_XO, V_X9, V_WR, V_WR + 1, V_WR + 2, V_WR + 3]
        for v in rd: G.place_valu(f"v_add_u32 v{v}, {QSLOT}, v{v}", 31, 34)
        G.emit(A)
        e(f"s_mov_b32 s{S_CNT}, 13"); e(f"s_mov_b32 s{S_SLOTI}, 1")
        A.raw(".p2align 6")
        A.label("L1_qloop")
        G = self.q_body(self.dma_stage(), vm=13)
        lastg = max(i for i in range(G.n) if G.kind[i] == 'G')
        sc = [f"s_mul_i32 s{S_SLOT}, s{S_SLOTI}, {QSLOT}", f"s_add_u32 s{S_SLOT}, s{S_SLOT}, s6",
              f"s_add_u32 s{S_XOFF}, s{S_XOFF}, 128", f"s_add_u32 s{S_WOFF}, s{S_WOFF}, {64 * 8192}"]
        early = [f"s_cmp_eq_u32 s{S_SLOTI}, 2", f"s_cselect_b32 s{S_DELTA}, {(-2 * QSLOT) & 0xffffffff}, s44"]
        self.tail_scalars(G, lastg, sc, early)
        for v in rd: G.place_valu(f"v_add_u32 v{v}, s{S_DELTA}, v{v}", 67, 70)
        if c.verbose: print("qloop", G.pattern(), file=sys.stderr)
        G.emit(A)
        e(f"s_add_u32 s{S_SLOTI}, s{S_SLOTI}, 1"); e(f"s_cmp_eq_u32 s{S_SLOTI}, 3"); e(f"s_cselect_b32 s{S_SLOTI}, 0, s{S_SLOTI}")
        e(f"s_sub_u32 s{S_CNT}, s{S_CNT}, 1"); e(f"s_cmp_lg_u32 s{S_CNT}, 0"); e("s_cbranch_scc1 L1_qloop")
        G = self.q_body(self.dma_kv(True, slot_imm=2 * 32768, off_imm=0), vm=8)
        for v in rd: G.place_valu(f"v_add_u32 v{v}, {(-2 * QSLOT) & 0xffffffff}, v{v}", 67, 70)
        G.emit(A)
        G = self.q_body(self.dma_kv(True, slot_imm=3 * 32768, off_imm=16384) + self.dma_kv(False, slot_imm=4 * 32768, off_imm=0), vm=24)
        G.emit(A)
        G = self.q_body(self.dma_kv(True, slot_imm=0, off_imm=32768), only_first_half=True)
        for i in range(152, 160): G.place_valu(f"v_accvgpr_write_b32 a{i}, 0", 0)
        G.emit(A)
        self.stamp()
        self.transition()
        self.attention()
        self.epilogue()
        A.label("L1_end")
        e("s_endpgm")
        self.slow_paths()

    def tail_scalars(self, G, lastg, sc, early):
        for i in range(30, G.n):
            if G.pre_room(i) >= 2 and not G.pre[i]:
                for x in early: G.add_pre(i, x)
                break
        else:
            raise RuntimeError("no room for early scalars")
        lo = lastg + 1
        for x in sc:
            lo = G.place_pre(x, lo, G.n - 2)

    def cvt_q(self, t, a_list):
        e = self.A.e
        for v in a_list:
            x, y = ACC(2 * v, t), ACC(2 * v + 1, t)
            q = Q(t, v)
            for b in (x, x + 2, y, y + 2):
                e(f"v_pk_mul_f32 {vr(b, 2)}, {vr(b, 2)}, {sr(S_QS, 2)}")
            e(f"v_cvt_pk_bf16_f32 v{q}, v{x}, v{x+1}")
            e(f"v_cvt_pk_bf16_f32 v{q+2}, v{y}, v{y+1}")
            e(f"v_cvt_pk_bf16_f32 v{q+1}, v{x+2}, v{x+3}")
            e(f"v_cvt_pk_bf16_f32 v{q+3}, v{y+2}, v{y+3}")
        e("s_nop 1")
        for v in a_list:
            q = Q(t, v)
            e(f"v_permlane16_swap_b32 v{q}, v{q+2}")
            e(f"v_permlane16_swap_b32 v{q+1}, v{q+3}")

    def k_reads(self, U):
        R = []
        for kt in range(2):
            for v in range(4):
                R.append(f"ds_read_b128 {ar(KF(kt, v), 4)}, v{V_KR + U * 2 + (v >> 1)} offset:{kt * 4096 + (v & 1) * 256}")
        return R

    def v_reads(self, U):
        R = []
        for u in range(8):
            for rho in range(2):
                R.append(f"ds_read_b64_tr_b16 {ar(VF(u) + 2 * rho, 2)}, v{V_VR + U * 2 + (u & 1)} offset:{rho * 4096 + (u >> 1) * 256}")
        return R

    def qk_mfmas(self, U, zero=False):
        M = []
        for kt in range(2):
            for v in range(4):
                for t in range(NT[U]):
                    d = vr(S_(U, kt, t), 4)
                    cc = d if v else ("0" if zero else vr(CI(t), 4))
                    M.append(mfma(d, ar(KF(kt, v), 4), vr(Q(t, v), 4), cc))
        return M

    def pv_mfmas(self, U):
        M = []
        for t in range(NT[U]):
            d = ar(L_(t), 4)
            M.append(mfma(d, ar(A_ONES, 4), vr(P_(U, t), 4), d))
        for u in range(8):
            for t in range(NT[U]):
                d = ar(O_(t, u), 4)
                M.append(mfma(d, ar(VF(u), 4), vr(P_(U, t), 4), d))
        return M

    def transition(self):
        A = self.A; e = A.e
        self.cvt_q(4, [0, 1])
        e(f"s_lshl_b32 s55, s{S_W}, 11"); e("s_add_u32 s55, s55, 32768")
        e(f"v_add_u32 v24, s55, v{V_L16}")
        e("v_xor_b32 v25, 2048, v24")
        e(f"ds_write_b128 v24, {vr(Q(4, 0), 4)}")
        e(f"ds_write_b128 v24, {vr(Q(4, 1), 4)} offset:1024")
        self.cvt_q(0, [0, 1, 2, 3])
        e("s_waitcnt vmcnt(24) lgkmcnt(0)")
        e("s_barrier")
        e(f"ds_read_b128 {vr(Q(4, 2), 4)}, v25")
        e(f"ds_read_b128 {vr(Q(4, 3), 4)}, v25 offset:1024")
        for r in self.k_reads(0): e(r)
        for t in range(1, 4): self.cvt_q(t, [0, 1, 2, 3])
        e(f"s_add_u32 s{S_VSLOT}, s6, {1 * 32768}")
        e(f"s_add_u32 s{S_KSLOT}, s6, {2 * 32768}")
        e(f"s_mov_b32 s{S_VOFF}, 16384"); e(f"s_mov_b32 s{S_KOFF}, {3 * 16384}")
        e(f"s_mov_b32 s{S_KRD}, {3 * 32768}")
        e(f"s_mov_b32 s{S_VRD}, {4 * 32768}")
        e("s_waitcnt lgkmcnt(0)")

    def softmax_ops(self, U):
        ex = []
        for t in range(NT[U]):
            for kt in range(2):
                for j in range(4):
                    ex.append((t, kt, j))
        return ex

    def sched_softmax(self, G, U, egaps, cvt_lo, last):
        ex = self.softmax_ops(U)
        assert len(egaps) == len(ex), (len(egaps), len(ex))
        tmp_free_at = self.tmp_free_at
        vlo = 0
        pregs = []
        nor = 0
        for i, (t, kt, j) in enumerate(ex):
            G.set(egaps[i], 'E', f"v_exp_f32 v{V_ET + (i % 16)}, v{S_(U, kt, t) + j}")
        for i, (t, kt, j) in enumerate(ex):
            tmp = V_ET + (i % 16)
            assert tmp_free_at[i % 16] < egaps[i], ("temp conflict", i, tmp_free_at[i % 16], egaps[i])
            if j & 1:
                dst = P_(U, t) + kt * 2 + (j >> 1)
                p = G.place_valu(f"v_cvt_pk_bf16_f32 v{dst}, v{tmp - 1}, v{tmp}", max(egaps[i] + 1, cvt_lo, vlo), last)
                vlo = p
                tmp_free_at[i % 16] = p; tmp_free_at[(i - 1) % 16] = p
                pregs.append(dst)
                if nor == 0 and len(pregs) == 3:
                    vlo = G.place_valu(f"v_or3_b32 v{V_OR}, v{pregs[0]}, v{pregs[1]}, v{pregs[2]}", vlo, last); pregs = []; nor = 1
                elif nor and len(pregs) == 2:
                    vlo = G.place_valu(f"v_or3_b32 v{V_OR}, v{pregs[0]}, v{pregs[1]}, v{V_OR}", vlo, last); pregs = []
        assert len(pregs) == 1
        vlo = G.place_valu(f"v_or_b32 v{V_OR}, v{pregs[0]}, v{V_OR}", vlo, last)
        vlo = G.place_valu(f"v_and_b32 v{V_CK}, 0x40004000, v{V_OR}", vlo, last)
        vlo = G.place_valu(f"v_cmp_ne_u32 vcc, 0, v{V_CK}", vlo, last)
        return vlo

    def check_branch(self, U, has_next=True):
        k = len(self.tramps)
        self.tramps.append((k, U, has_next))
        return [f"s_cbranch_vccnz L1_tramp{k}", f"L1_back{k}:"]

    def attention(self):
        A = self.A; e = A.e; c = self.cfg
        G = Gaps(self.qk_mfmas(0, zero=True))
        init = [f"v_accvgpr_write_b32 a{i}, 0" for i in range(L_(0), L_(0) + 20)]
        e("v_mov_b32 v24, 0x3f803f80")
        init += [f"v_accvgpr_write_b32 a{A_ONES + i}, v24" for i in range(4)]
        for x in init: G.place_valu(x, 0)
        R = self.k_reads(1)
        for i, r in enumerate(R):
            g = min(5 * i + 4, 39)
            if G.free_main(g, 'T'): G.set(g, 'T', r)
            else: G.post[g].append(r)
        G.emit(A)
        e("s_nop 7")
        for t in range(5):
            a, b = S_(0, 0, t), S_(0, 1, t)
            m = CI(t)
            e(f"v_max3_f32 v{m}, v{a}, v{a+1}, v{a+2}")
            e(f"v_max3_f32 v{m+1}, v{a+3}, v{b}, v{b+1}")
            e(f"v_max3_f32 v{m}, v{b+2}, v{b+3}, v{m}")
            e(f"v_max_f32 v{m}, v{m}, v{m+1}")
            e(f"v_mov_b32 v{m+1}, v{m}")
        for sw in ("v_permlane32_swap_b32", "v_permlane16_swap_b32"):
            e("s_nop 1")
            for t in range(5): e(f"{sw} v{CI(t)}, v{CI(t)+1}")
            for t in range(5):
                m = CI(t)
                e(f"v_max_f32 v{m}, v{m}, v{m+1}")
                if sw.startswith("v_permlane32"): e(f"v_mov_b32 v{m+1}, v{m}")
        for t in range(5):
            m = CI(t)
            e(f"v_sub_f32 v{m}, {f32(-BIAS)}, v{m}")
            for k in range(1, 4): e(f"v_mov_b32 v{m+k}, v{m}")
        e("s_waitcnt lgkmcnt(0)")
        G = Gaps(self.qk_mfmas(1))
        adds = []
        for t in range(5):
            for kt in range(2):
                for j in range(4):
                    s = S_(0, kt, t) + j
                    adds.append(f"v_add_f32 v{s}, v{s}, v{CI(t)}")
        for x in adds: G.place_valu(x, 0)
        G.emit(A)
        e("s_waitcnt vmcnt(16)"); e("s_barrier")
        for i in range(4): e(f"v_add_u32 v{V_KR + i}, 32768, v{V_KR + i}")
        for r in self.k_reads(0): e(r)
        self.softmax_plain(0)
        e("s_waitcnt vmcnt(8) lgkmcnt(0)"); e("s_barrier")
        self.stamp()
        e(f"s_mov_b32 s{S_CNT}, 0")
        A.raw(".p2align 6")
        A.label("L1_aloop")
        self.att_iter(last=False)
        e(f"s_add_u32 s{S_CNT}, s{S_CNT}, 1"); e(f"s_cmp_lt_u32 s{S_CNT}, 7"); e("s_cbranch_scc1 L1_aloop")
        self.stamp()
        self.att_tail()

    def softmax_plain(self, U):
        e = self.A.e
        ex = self.softmax_ops(U)
        pend = None
        for i, (t, kt, j) in enumerate(ex):
            tmp = V_ET + (i % 16)
            e(f"v_exp_f32 v{tmp}, v{S_(U, kt, t) + j}")
            if pend: e(pend); pend = None
            if j & 1:
                pend = f"v_cvt_pk_bf16_f32 v{P_(U, t) + kt * 2 + (j >> 1)}, v{tmp - 1}, v{tmp}"
        e("s_nop 0")
        e(pend)

    def att_iter(self, last):
        A = self.A; e = A.e; c = self.cfg
        m1, m2, m3, m4 = self.qk_mfmas(0), self.pv_mfmas(0), self.qk_mfmas(1), self.pv_mfmas(1)
        G = Gaps(m1 + m2 + m3 + m4)
        self.tmp_free_at = [-1] * 16
        b2 = len(m1); b3 = b2 + len(m2); b4 = b3 + len(m3); n = G.n
        G.add_pre(b2 - 1, "s_waitcnt lgkmcnt(0)")
        G.add_pre(b3 - 1, "s_waitcnt lgkmcnt(0)")
        G.add_pre(b4 - 1, "s_waitcnt vmcnt(16) lgkmcnt(0)"); G.add_pre(b4 - 1, "s_barrier")
        G.add_pre(n - 1, "s_waitcnt vmcnt(8) lgkmcnt(0)"); G.add_pre(n - 1, "s_barrier")
        dv = self.dma_kv(False, slot_s=S_VSLOT, off_s=S_VOFF)
        dk = self.dma_kv(True, slot_s=S_KSLOT, off_s=S_KOFF)
        pv = [2 + 4 * i for i in range(8)]
        pk = [b2 + 2 + 5 * i for i in range(8)]
        pl = self.put_dmas(G, dv + dk, pv + pk)
        def put_reads(R, lo, hi, stride):
            i = lo
            for r in R:
                while not G.free_main(i, 'T'): i += 1
                assert i <= hi, (i, hi)
                G.set(i, 'T', r); i += stride
        put_reads(self.v_reads(0), 1, b2 - 7, 2)
        put_reads(self.k_reads(1), b2 + 1, b3 - 8, 4)
        for k, r in enumerate(self.v_reads(1)): G.set(b3 + (k * 3) // 2, 'T', r)
        put_reads(self.k_reads(0), b4 + 1, n - 8, 3)
        self.put_preludes(G, pl)
        free = [i for i in range(n) if G.free_main(i, 'E') and len(G.pre[i]) <= 1 and i not in (b3 - 1, n - 1, b4 - 1)]
        fo = [i for i in free if i < b3 - 1]
        eB = self.pick(fo[:-7], 32)
        EARLY = 6
        eAe = fo[-7:-1]
        fe = [i for i in free if i >= b3 and i < n - 4]
        eA = eAe + self.pick(fe, 40 - EARLY)
        pb = self.sched_softmax_reserved(G, 1, eB, eA, 0, b3 - 2)
        pa = self.sched_softmax(G, 0, eA, b3, n - 2)
        sc = [[f"s_cmp_ge_u32 s{S_KRD}, {3 * 32768}", f"s_cselect_b32 s{S_DK}, {(-98304) & 0xffffffff}, s45", ],
              [f"s_cmp_ge_u32 s{S_VRD}, {3 * 32768}", f"s_cselect_b32 s{S_DV}, {(-98304) & 0xffffffff}, s45", ]]
        self.G = G
        lastKB = max(i for i in range(b2, b3) if G.kind[i] == 'T')
        lastg = pk[-1]
        i = lastg + 1
        seq = [f"s_add_u32 s{S_VSLOT}, s{S_KRD}, s6", f"s_add_u32 s{S_KSLOT}, s{S_VRD}, s6",
               sc[0][0], sc[0][1], sc[1][0], sc[1][1],
               f"s_add_u32 s{S_KRD}, s{S_KRD}, s{S_DK}", f"s_add_u32 s{S_VRD}, s{S_VRD}, s{S_DV}",
               f"s_add_u32 s{S_VOFF}, s{S_VOFF}, 16384", f"s_add_u32 s{S_KOFF}, s{S_KOFF}, 16384",
               f"s_cmp_ge_u32 s{S_KOFF}, {8 * 16384}", f"s_cselect_b32 s{S_KOFF}, 0x7ff00000, s{S_KOFF}"]
        pos = {}
        for x in seq:
            i = G.place_pre(x, i, n - 2); pos[x] = i
        dk_ready = pos[sc[0][1]] + 1; dv_ready = pos[sc[1][1]] + 1
        lastVB = max(i for i in range(b3, b4) if G.kind[i] == 'T')
        firstKA = min(i for i in range(b4, n) if G.kind[i] == 'T')
        for k in range(4):
            p = G.place_valu(f"v_add_u32 v{V_KR + k}, s{S_DK}, v{V_KR + k}", max(dk_ready, lastKB + 1), firstKA - 1)
        for k in range(2):
            p = G.place_valu(f"v_add_u32 v{V_VR + k}, s{S_DV}, v{V_VR + k}", dv_ready, n - 2)
        for k in range(2, 4):
            p = G.place_valu(f"v_add_u32 v{V_VR + k}, s{S_DV}, v{V_VR + k}", max(dv_ready, lastVB + 1), n - 2)
        G.post[b3 - 1] += self.check_branch(1)
        G.post[n - 1] += self.check_branch(0)
        if c.verbose: print("aloop", G.pattern(), file=sys.stderr)
        self.emit_labels(G)

    def sched_softmax_reserved(self, G, U, eg, reserved, cvt_lo, last):
        for i in reserved: G.kind[i] = 'X'
        r = self.sched_softmax(G, U, eg, cvt_lo, last)
        for i in reserved: G.kind[i] = None
        return r

    @staticmethod
    def pick(lst, k):
        n = len(lst)
        assert n >= k, (n, k)
        drop = set()
        d = n - k
        for i in range(d):
            drop.add(int((i + 1) * n / (d + 1)))
        assert len(drop) == d
        return [x for i, x in enumerate(lst) if i not in drop]

    def emit_labels(self, G):
        A = self.A
        for i in range(G.n):
            A.e(G.m[i])
            for x in G.pre[i] + G.main[i] + G.valu[i] + G.post[i]:
                if x.endswith(":"): A.raw(x)
                else: A.e(x)

    def att_tail(self):
        A = self.A; e = A.e
        for r in self.v_reads(0): e(r)
        m2 = self.pv_mfmas(0)
        G = Gaps(m2)
        G.add_pre(4, "s_waitcnt lgkmcnt(0)")
        R = self.v_reads(1)
        free = list(range(G.n))
        for u in range(7):
            g0 = 5 + 5 * u + 4
            G.set(g0, 'T', R[2 * u]); G.set(g0 + 1, 'T', R[2 * u + 1])
        fe = [i for i in range(G.n - 1) if G.free_main(i, 'E')]
        ne = len(fe)
        pre_n = 8
        ex = self.softmax_ops(1)
        G0 = Gaps(["s_nop 0"] * pre_n + m2)
        self.tmp_free_at = [-1] * 16
        G0.add_pre(pre_n + 4, "s_waitcnt lgkmcnt(0)")
        for u in range(7):
            g0 = pre_n + 5 + 5 * u + 4
            G0.set(g0, 'T', R[2 * u]); G0.set(g0 + 1, 'T', R[2 * u + 1])
        fe = [i for i in range(G0.n - 4) if G0.free_main(i, 'E')]
        eB = fe[:pre_n] + self.pick(fe[pre_n:], 32 - pre_n)
        self.sched_softmax(G0, 1, eB, 0, G0.n - 1)
        G0.post[G0.n - 1] += [R[14], R[15]] + self.check_branch(1, has_next=False) + ["s_nop 1"]
        if self.cfg.verbose: print("tail", G0.pattern(), file=sys.stderr)
        self.emit_labels(G0)
        m4 = self.pv_mfmas(1)
        G = Gaps(m4)
        G.add_pre(3, "s_waitcnt lgkmcnt(2)")
        G.add_pre(4 + 4 * 7 - 1, "s_waitcnt lgkmcnt(0)")
        e(f"s_lshl_b32 s55, s{S_W}, 14")
        e(f"v_add_u32 v24, s55, v{V_L16}")
        G.emit(A)
        self.stamp()

    def epilogue(self):
        A = self.A; e = A.e; c = self.cfg
        for u in range(8):
            e(f"ds_write_b128 v24, {ar(O_(4, u), 4)} offset:{u * 1024}")
        e(f"v_accvgpr_read_b32 v{CI(4) + 1}, a{L_(4)}")
        e(f"ds_write_b128 v24, {vr(CI(4), 4)} offset:8192")
        e(f"s_mul_i32 s55, s{S_HH}, 36864"); e(f"s_lshl_b32 s54, s{S_HF}, 12"); e("s_add_u32 s55, s55, s54")
        e(f"v_add_u32 v25, s55, v{V_L16}")
        e("s_nop 4")
        for t in range(4):
            e(f"v_accvgpr_read_b32 v{26 + t}, a{L_(t)}")
        for t in range(4):
            e(f"v_rcp_f32 v{26 + t}, v{26 + t}")
        e("s_waitcnt lgkmcnt(0)"); e("s_barrier")
        e(f"s_and_b32 s54, s{S_W}, 2"); e("s_lshl_b32 s54, s54, 14"); e(f"s_lshl_b32 s53, s{S_HF}, 12"); e("s_add_u32 s53, s53, s54")
        e(f"v_add_u32 v30, s53, v{V_L16}"); e(f"v_add_u32 v31, s54, v{V_L16}")
        N0 = 32
        for p in range(2):
            for k in range(4):
                e(f"ds_read_b128 {vr(N0 + p * 16 + k * 4, 4)}, v30 offset:{p * 16384 + k * 1024}")
            e(f"ds_read_b64 {vr(N0 + 32 + p * 2, 2)}, v31 offset:{p * 16384 + 8192}")
        T0 = 112
        k = 0
        for t in range(4):
            for v in range(4):
                tb = T0 + (k % 6) * 12; k += 1
                for i in range(8):
                    e(f"v_accvgpr_read_b32 v{tb + i}, a{O_(t, 2 * v) + i}")
                for i in range(0, 8, 2):
                    rr = 26 + t
                    if rr % 2 == 0: e(f"v_pk_mul_f32 {vr(tb + i, 2)}, {vr(tb + i, 2)}, {vr(rr, 2)} op_sel_hi:[1,0]")
                    else: e(f"v_pk_mul_f32 {vr(tb + i, 2)}, {vr(tb + i, 2)}, {vr(rr - 1, 2)} op_sel:[0,1] op_sel_hi:[1,1]")
                for i in range(4):
                    e(f"v_cvt_pk_bf16_f32 v{tb + 8 + i}, v{tb + 2 * i}, v{tb + 2 * i + 1}")
                e(f"s_mov_b32 s{S_T}, {v * 9216}")
                e(f"buffer_store_dwordx4 {vr(tb + 8, 4)}, v25, {sr(SO, 4)}, s{S_T} offen offset:{t * 1024}{pol(c.ost_pol)}")
        e("s_waitcnt lgkmcnt(0)")
        e("v_min_f32 v68, v64, v66")
        e("v_sub_f32 v64, v68, v64"); e("v_sub_f32 v66, v68, v66")
        e("v_exp_f32 v64, v64"); e("v_exp_f32 v66, v66")
        e("s_nop 0")
        e("v_mul_f32 v69, v65, v64"); e("v_fmac_f32 v69, v67, v66")
        e("v_rcp_f32 v69, v69")
        e("s_nop 0")
        e("v_mul_f32 v64, v64, v69"); e("v_mul_f32 v66, v66, v69")
        for i in range(16):
            e(f"v_mul_f32 v{N0 + i}, v{N0 + i}, v64")
            e(f"v_fmac_f32 v{N0 + i}, v{N0 + 16 + i}, v66")
        for i in range(8):
            e(f"v_cvt_pk_bf16_f32 v{72 + i}, v{N0 + 2 * i}, v{N0 + 2 * i + 1}")
        e(f"s_mul_i32 s55, s{S_HH}, 36864"); e(f"s_mul_i32 s54, s{S_HF}, 18432"); e(f"s_add_u32 s55, s55, s54"); e("s_add_u32 s55, s55, 8192")
        e(f"buffer_store_dwordx4 v[72:75], v{V_L16}, {sr(SO, 4)}, s55 offen{pol(c.ost_pol)}")
        e("s_add_u32 s55, s55, 9216")
        e(f"buffer_store_dwordx4 v[76:79], v{V_L16}, {sr(SO, 4)}, s55 offen{pol(c.ost_pol)}")
        if c.stamp:
            e("s_waitcnt vmcnt(0)")
            self.stamp()
            e(f"s_memrealtime {sr(S_ST + 2 * self.nst, 2)}"); self.nst += 1
            e("s_waitcnt lgkmcnt(0)")
            e(f"s_cmp_lg_u32 s{S_W}, 0"); e("s_cbranch_scc1 L1_end")
            e(f"s_add_u32 s{SO}, s56, {STAMP_OFF}"); e(f"s_addc_u32 s{SO+1}, s57, 0"); e(f"s_mov_b32 s{SO+2}, 0x100000")
            e("s_lshl_b32 s55, s2, 7"); e("v_mov_b32 v1, 0"); e("s_mov_b64 exec, 1")
            for i in range(self.nst):
                e(f"v_mov_b32 v2, s{S_ST + 2 * i}"); e(f"v_mov_b32 v3, s{S_ST + 2 * i + 1}")
                e(f"buffer_store_dwordx2 v[2:3], v1, {sr(SO, 4)}, s55 offen offset:{8 * i}")
                e("s_nop 1")

    def slow_paths(self):
        A = self.A; e = A.e
        kinds = sorted(set((U, hn) for _, U, hn in self.tramps))
        for k, U, hn in self.tramps:
            A.label(f"L1_tramp{k}")
            e(f"s_call_b64 {sr(S_RET, 2)}, L1_slow{U}{int(hn)}")
            e(f"s_branch L1_back{k}")
        for U, hn in kinds:
            A.label(f"L1_slow{U}{int(hn)}")
            e("s_nop 15")
            T = V_ET
            for t in range(NT[U]):
                a, b = S_(U, 0, t), S_(U, 1, t)
                e(f"v_max3_f32 v{T}, v{a}, v{a+1}, v{a+2}")
                e(f"v_max3_f32 v{T+1}, v{a+3}, v{b}, v{b+1}")
                e(f"v_max3_f32 v{T}, v{b+2}, v{b+3}, v{T}")
                e(f"v_max_f32 v{T}, v{T}, v{T+1}")
                for sw in ("v_permlane32_swap_b32", "v_permlane16_swap_b32"):
                    e(f"v_mov_b32 v{T+1}, v{T}"); e("s_nop 1")
                    e(f"{sw} v{T}, v{T+1}"); e("s_nop 1")
                    e(f"v_max_f32 v{T}, v{T}, v{T+1}")
                e(f"v_sub_f32 v{T}, {f32(-BIAS)}, v{T}")
                e(f"v_min_f32 v{T}, 0, v{T}")
                e(f"v_exp_f32 v{T+1}, v{T}")
                for kt in range(2):
                    for j in range(4):
                        s = S_(U, kt, t) + j
                        e(f"v_add_f32 v{s}, v{s}, v{T}")
                if hn and t < NT[1 - U]:
                    for kt in range(2):
                        for j in range(4):
                            s = S_(1 - U, kt, t) + j
                            e(f"v_add_f32 v{s}, v{s}, v{T}")
                for j in range(4): e(f"v_add_f32 v{CI(t) + j}, v{CI(t) + j}, v{T}")
                regs = [O_(t, u) + j for u in range(8) for j in range(4)] + [L_(t) + j for j in range(4)]
                for i in range(0, len(regs), 4):
                    for j in range(4): e(f"v_accvgpr_read_b32 v{T + 2 + j}, a{regs[i + j]}")
                    for j in range(4): e(f"v_mul_f32 v{T + 2 + j}, v{T + 2 + j}, v{T + 1}")
                    for j in range(4): e(f"v_accvgpr_write_b32 a{regs[i + j]}, v{T + 2 + j}")
            self.softmax_plain(U)
            if U == 1 and hn:
                ex = self.softmax_ops(0)
                for i in range(6):
                    t, kt, j = ex[i]
                    e(f"v_exp_f32 v{V_ET + i}, v{S_(0, kt, t) + j}")
            e("s_nop 3")
            e(f"s_setpc_b64 {sr(S_RET, 2)}")


def kd(name, vgpr, accum):
    return f""".amdhsa_kernel {name}
  .amdhsa_next_free_vgpr {vgpr}
  .amdhsa_next_free_sgpr 102
  .amdhsa_accum_offset {accum}
  .amdhsa_group_segment_fixed_size 0
  .amdhsa_kernarg_size 104
  .amdhsa_user_sgpr_count 2
  .amdhsa_user_sgpr_kernarg_segment_ptr 1
  .amdhsa_system_sgpr_workgroup_id_x 1
.end_amdhsa_kernel
"""

def build(cfg):
    from gen_k2 import K2
    A = Asm()
    hdr = open("cdna_kernels/" + NAME + ".s.ref").read().split("; Override launch")[0]
    A.raw(hdr.rstrip())
    A.raw("; @launch kernel=attn_kernel grid=(256,1,1) block=(256,1,1) lds=163840")
    k2 = K2(A, cfg)
    A.raw(f"; @launch kernel=oproj_kernel grid=(256,1,1) block=(256,1,1) lds={k2.lds}")
    A.raw('.amdgcn_target "amdgcn-amd-amdhsa--gfx950"')
    A.raw(".text")
    A.raw(".globl attn_kernel")
    K1(A, cfg).gen()
    A.raw(".globl oproj_kernel")
    k2.gen()
    A.raw('.section .rodata,"a"')
    A.raw(".p2align 6")
    A.raw(kd("attn_kernel", 512, 256))
    A.raw(".p2align 6")
    A.raw(kd("oproj_kernel", k2.vgprs, k2.accum))
    return A.text()

if __name__ == "__main__":
    cfg = Cfg()
    out = sys.argv[1]
    for kv in sys.argv[2:]:
        k, v = kv.split("=")
        cur = getattr(cfg, k)
        setattr(cfg, k, (v == "1") if isinstance(cur, bool) else (int(v) if isinstance(cur, int) else v.replace("+", " ")))
    open(out, "w").write(build(cfg))
```

```python
import sys
NAME = "concat_heads__mha_block_cached__mha_block_cached__near_ridge"
def gen(pat, steps, wave_off, iters=64, per=16, tovgpr=False, wrap=0xfffff):
    L = []; e = L.append
    e(f"; @launch grid=(256,1,1) block=(256,1,1) lds=163840")
    e('.amdgcn_target "amdgcn-amd-amdhsa--gfx950"')
    e(".text"); e(f".globl {NAME}_kernel"); e(".p2align 8"); e(f".type {NAME}_kernel,@function"); e(f"{NAME}_kernel:")
    e("s_cmp_ge_u32 s2, 256"); e("s_cbranch_scc1 L_end")
    e("s_load_dwordx2 s[4:5], s[0:1], 24"); e("s_load_dwordx2 s[6:7], s[0:1], 96"); e("s_waitcnt lgkmcnt(0)")
    e("s_mov_b32 s8, s4"); e("s_mov_b32 s9, s5"); e("s_mov_b32 s10, 0x800000"); e("s_mov_b32 s11, 0x20000")
    e("s_mov_b32 s12, s6"); e("s_mov_b32 s13, s7"); e("s_mov_b32 s14, 0x10000000"); e("s_mov_b32 s15, 0x20000")
    e("v_lshrrev_b32 v1, 6, v0"); e("s_nop 0"); e("v_readfirstlane_b32 s20, v1")
    e("v_mov_b32 v3, 0")
    for l in range(64):
        e(f"s_mov_b32 s40, {pat(l)}"); e(f"v_writelane_b32 v3, s40, {l}")
    e("s_lshl_b32 s24, s20, 14"); e("s_mov_b32 m0, s24")
    e(f"s_mul_i32 s27, s20, {wave_off}")
    e("s_mov_b32 s23, 0")
    for warm in range(2):
        if warm == 1:
            e("s_waitcnt vmcnt(0)"); e("s_barrier")
            e("s_memtime s[30:31]"); e("s_memrealtime s[34:35]")
        e(f"s_mov_b32 s25, {iters}")
        e(f"L_loop{warm}:")
        for i in range(per):
            e("s_add_u32 s26, s27, s23")
            if tovgpr: e(f"buffer_load_dwordx4 v[{8+4*i}:{11+4*i}], v3, s[8:11], s26 offen")
            else: e(f"buffer_load_dwordx4 v3, s[8:11], s26 offen lds")
            e(f"s_add_u32 s23, s23, {steps[i % len(steps)]}"); e(f"s_and_b32 s23, s23, {wrap}")
            e(f"s_waitcnt vmcnt({per-1})")
        e("s_sub_u32 s25, s25, 1"); e("s_cmp_lg_u32 s25, 0"); e(f"s_cbranch_scc1 L_loop{warm}")
    e("s_waitcnt vmcnt(0) lgkmcnt(0)"); e("s_barrier")
    e("s_memtime s[32:33]"); e("s_memrealtime s[36:37]"); e("s_waitcnt lgkmcnt(0)")
    e("s_cmp_lg_u32 s20, 0"); e("s_cbranch_scc1 L_end")
    e("v_mov_b32 v8, s30"); e("v_mov_b32 v9, s31"); e("v_mov_b32 v10, s32"); e("v_mov_b32 v11, s33")
    e("v_mov_b32 v12, s34"); e("v_mov_b32 v13, s35"); e("v_mov_b32 v14, s36"); e("v_mov_b32 v15, s37")
    e("s_lshl_b32 s26, s2, 5"); e("v_mov_b32 v16, 0"); e("s_mov_b64 exec, 1")
    e("buffer_store_dwordx4 v[8:11], v16, s[12:15], s26 offen")
    e("buffer_store_dwordx4 v[12:15], v16, s[12:15], s26 offen offset:16")
    e("L_end:"); e("s_endpgm")
    e('.section .rodata,"a"'); e(".p2align 6"); e(f".amdhsa_kernel {NAME}_kernel")
    e(f"  .amdhsa_next_free_vgpr 512"); e("  .amdhsa_next_free_sgpr 102"); e("  .amdhsa_accum_offset 256")
    e("  .amdhsa_group_segment_fixed_size 0"); e("  .amdhsa_kernarg_size 104"); e("  .amdhsa_user_sgpr_count 2")
    e("  .amdhsa_user_sgpr_kernarg_segment_ptr 1"); e("  .amdhsa_system_sgpr_workgroup_id_x 1"); e(".end_amdhsa_kernel")
    return "\n".join(L) + "\n"
W = lambda n, s: open(f"mb_{n}.s", "w").write(s)
for c in (0, 256, 512, 768, 1024, 1536):
    W(f"c{c:04d}", gen(lambda l, c=c: ((l >> 2) & 3) * 8192 + (l >> 4) * 64 + (l & 3) * 16 + c, [131072], 32768, wrap=0x7fffff))
for c in (0, 512):
    W(f"d{c:04d}", gen(lambda l, c=c: ((l >> 2) & 3) * 8192 + (l >> 4) * 64 + (l & 3) * 16 + c, [256, 131072 - 256], 32768, wrap=0x7fffff))
W("e_h02", gen(lambda l: ((l >> 2) & 3) * 8192 + (l >> 4) * 64 + (l & 3) * 16, [512, 131072 - 512], 32768, wrap=0x7fffff))
for c in (0, 128, 256, 512, 1024, 1152):
    W(f"x{c:04d}", gen(lambda l, c=c: (l >> 3) * 2048 + (l & 7) * 16 + c, [65536], 16384, wrap=0x1fffff))
```
